```python
import torch

def _softmax(x, axis=-1):
    return torch.softmax(x, dim=axis)
def _gelu(x):
    return torch.nn.functional.gelu(x, approximate="tanh")
def _silu(x):
    return torch.nn.functional.silu(x)
def _sigmoid(x):
    return torch.sigmoid(x)
def _layernorm(x, axis=-1, eps=1e-5):
    m = x.mean(dim=axis, keepdim=True)
    v = x.var(dim=axis, keepdim=True, unbiased=False)
    return (x - m) / torch.sqrt(v + eps)
def _scatter_add(tgt, idx, src, axis=0):
    return tgt.clone().index_add_(axis, idx, src)
def _segment_sum(src, seg, n):
    out = torch.zeros((n,) + src.shape[1:], dtype=src.dtype)
    return out.index_add_(0, seg, src)
def _pad(x, pw):
    flat = tuple(v for pair in reversed(pw) for v in pair)
    return torch.nn.functional.pad(x, flat)

kernel_name = 'parallel_sum__ssm_conv_h3__moe_arch_mod__prompt'

def setup_inputs():

    _w = (lambda a: (lambda t: t.to(torch.bfloat16) if t.is_floating_point() else t)(torch.as_tensor(a)))
    def _A_setup():
        B, S, D = 1, 2048, 1024
        ks = 4
        return {
            "q": _w((lambda *s: torch.randn(*s, dtype=torch.bfloat16) * 0.05)(B, S, D)),
            "k": _w((lambda *s: torch.randn(*s, dtype=torch.bfloat16) * 0.8)(B, S, D)),
            "v": _w((lambda *s: torch.randn(*s, dtype=torch.bfloat16) * 0.8)(B, S, D)),
            "shift_k": _w((lambda *s: torch.randn(*s, dtype=torch.bfloat16) * 0.8)(D, ks) * 0.5),
            "ssm_k": _w((lambda *s: torch.randn(*s, dtype=torch.bfloat16) * 0.8)(D, S) * (1.0 / S ** 0.5)),
            "ssm_D": _w((lambda *s: torch.randn(*s, dtype=torch.bfloat16) * 0.8)(D)),
        }
    _A_in = _A_setup()

    def _B_setup():
        B, S, D, F, C = 1, 2048, 1024, 3584, 2
        return {
            "x": _w((lambda *s: torch.randn(*s, dtype=torch.bfloat16) * 0.05)(B, S, D)),
            "w_r": _w((lambda *s: torch.randn(*s, dtype=torch.bfloat16) * 0.05)(D)),
            "w_gate": _w((lambda *s: torch.randn(*s, dtype=torch.bfloat16) * 0.05)(D, F)),
            "w_up": _w((lambda *s: torch.randn(*s, dtype=torch.bfloat16) * 0.05)(D, F)),
            "w_down": _w((lambda *s: torch.randn(*s, dtype=torch.bfloat16) * 0.05)(F, D)),
        }
    _B_in = _B_setup()

    return {
        "A_q": _A_in["q"],
        "A_k": _A_in["k"],
        "A_v": _A_in["v"],
        "A_shift_k": _A_in["shift_k"],
        "A_ssm_k": _A_in["ssm_k"],
        "A_ssm_D": _A_in["ssm_D"],
        "B_x": _B_in["x"],
        "B_w_r": _B_in["w_r"],
        "B_w_gate": _B_in["w_gate"],
        "B_w_up": _B_in["w_up"],
        "B_w_down": _B_in["w_down"],
    }

def reference(A_q, A_k, A_v, A_shift_k, A_ssm_k, A_ssm_D, B_x, B_w_r, B_w_gate, B_w_up, B_w_down):
    def _A_ref(q, k, v, shift_k, ssm_k, ssm_D):
        B, S, D = q.shape
        ks = shift_k.shape[-1]
        k_pad = _pad(k, ((0, 0), (ks - 1, 0), (0, 0)))
        k_shift = torch.zeros_like(k)
        for t in range(ks):
            k_shift = k_shift + k_pad[:, t:t + S, :] * shift_k[:, ks - 1 - t][None, None, :]
        kv = k_shift * v
        L = 2 * S
        kv_pad = _pad(kv, ((0, 0), (0, S), (0, 0)))
        kf_pad = _pad(ssm_k, ((0, 0), (0, S)))
        kv_f = (lambda x, axes=(-2,-1): torch.fft.rfft2(x.float(), dim=axes))(kv_pad[:, None, :, :], axes=(1, 2))
        kf_f = (lambda x, axes=(-2,-1): torch.fft.rfft2(x.float(), dim=axes))(kf_pad[:, None, :], axes=(1, 2))
        kf_f = (lambda x, *d: x.permute(*d))(kf_f, 1, 2, 0)
        y_f = kv_f * kf_f[None, :, :, :]
        y = (lambda x, s, axes=(-2,-1): torch.fft.irfft2(x, s=s, dim=axes).to(torch.bfloat16))(y_f, (1, L), axes=(1, 2))[:, 0, :S, :]
        y = y + kv * ssm_D[None, None, :]
        return q * y

    def _B_ref(x, w_r, w_gate, w_up, w_down):
        B, S, D = x.shape
        C = 2
        r = x @ w_r
        idx = torch.argsort(-r, axis=-1)[:, :C]
        idx_e = (lambda x, n, axis: torch.repeat_interleave(x, n, dim=axis))(idx.reshape(B, C, 1), D, axis=2)
        x_sel = (lambda x, i, axis: torch.take_along_dim(x, i, dim=axis))(x, idx_e, axis=1)
        g = _silu(x_sel @ w_gate)
        u = x_sel @ w_up
        y = (g * u) @ w_down
        r_sel = _sigmoid((lambda x, i, axis: torch.take_along_dim(x, i, dim=axis))(r, idx, axis=1))
        y = y * r_sel.reshape(B, C, 1)
        b_off = (torch.arange(B) * S).reshape(B, 1)
        flat_idx = (idx + b_off).reshape(B * C)
        zero = (x * 0.0).reshape(B * S, D)
        upd = _scatter_add(zero, flat_idx, y.reshape(B * C, D), axis=0)
        return x + upd.reshape(B, S, D)

    x = A_q
    xn = _layernorm(x, axis=-1)
    return x + _A_ref(xn, A_k, A_v, A_shift_k, A_ssm_k, A_ssm_D) + _B_ref(xn, B_w_r, B_w_gate, B_w_up, B_w_down)
```

```python
import re

REG_RE = re.compile(r'(?<![\w.])([vsa])(?:(\d+)|\[(\d+):(\d+)\])(?![\w])')
TRANS = ('v_exp_f32', 'v_log_f32', 'v_rcp_f32', 'v_rsq_f32', 'v_sqrt_f32', 'v_sin_f32', 'v_cos_f32')


def v(n, c=1):
    return f'v{n}' if c == 1 else f'v[{n}:{n+c-1}]'


def s(n, c=1):
    return f's{n}' if c == 1 else f's[{n}:{n+c-1}]'


def a(n, c=1):
    return f'a{n}' if c == 1 else f'a[{n}:{n+c-1}]'


def regs_of(txt):
    out = set()
    for m in REG_RE.finditer(txt):
        f = m.group(1)
        if m.group(2) is not None:
            out.add((f, int(m.group(2))))
        else:
            for i in range(int(m.group(3)), int(m.group(4)) + 1):
                out.add((f, i))
    if re.search(r'\bvcc\b', txt):
        out.add(('s', 106)); out.add(('s', 107))
    if re.search(r'\bm0\b', txt):
        out.add(('s', 124))
    if re.search(r'\bexec\b', txt):
        out.add(('s', 126)); out.add(('s', 127))
    return out


def split_ops(rest):
    ops, depth, cur = [], 0, ''
    for ch in rest:
        if ch in '[(':
            depth += 1
        if ch in '])':
            depth -= 1
        if ch == ',' and depth == 0:
            ops.append(cur.strip()); cur = ''
        else:
            cur += ch
    if cur.strip():
        ops.append(cur.strip())
    return ops


class Ins:
    __slots__ = ('mn', 'txt', 'kind', 'wr', 'rd', 'states', 'dpp', 'srcC', 'srcAB', 'lanesel', 'wide_store', 'sdata')


class Asm:
    def __init__(self):
        self.lines = []
        self.hist = []
        self.vm = []
        self.lg = []
        self.nlabel = 0

    def raw(self, t):
        self.lines.append(t)

    def comment(self, t):
        self.lines.append('    ; ' + t)

    def label(self, name, fence=True):
        self.lines.append(name + ':')
        if fence:
            self.op('s_nop 7'); self.op('s_nop 1')

    def newlabel(self, p='L'):
        self.nlabel += 1
        return f'{p}_{self.nlabel}'

    def parse(self, txt):
        i = Ins()
        i.txt = txt
        parts = txt.split(None, 1)
        mn = parts[0]
        rest = parts[1] if len(parts) > 1 else ''
        i.mn = mn
        ops = split_ops(rest)
        i.states = 1
        i.dpp = ('_dpp' in mn) or bool(re.search(r'quad_perm|row_shr|row_shl|row_ror|row_bcast|row_mirror|row_half_mirror|wave_sh|wave_ro', rest))
        i.srcC = set(); i.srcAB = set(); i.lanesel = set(); i.wide_store = False; i.sdata = set()
        allr = lambda lst: set().union(*[regs_of(o) for o in lst]) if lst else set()
        if mn == 's_nop':
            i.kind = 'nop'; i.wr = set(); i.rd = set(); i.states = int(rest, 0) + 1
        elif mn.startswith('v_mfma'):
            i.kind = 'mfma'; i.wr = regs_of(ops[0]); i.srcAB = allr(ops[1:3]); i.srcC = regs_of(ops[3]); i.rd = i.srcAB | i.srcC
        elif mn.startswith('v_permlane') and 'swap' in mn:
            i.kind = 'valu'; i.wr = allr(ops[:2]); i.rd = allr(ops[:2])
        elif mn.startswith('v_'):
            i.kind = 'valu'; i.wr = regs_of(ops[0]); i.rd = allr(ops[1:])
            if mn.startswith(('v_fmac', 'v_dot2c', 'v_writelane', 'v_pk_fmac')) or i.dpp:
                i.rd |= i.wr
            if mn.startswith(('v_readlane', 'v_writelane')):
                i.lanesel = regs_of(ops[2])
            if mn.startswith('v_cndmask') and len(ops) == 3:
                i.rd |= {('s', 106), ('s', 107)}
        elif mn.startswith(('buffer_load', 'global_load')):
            i.kind = 'vmem'
            if ' lds' in txt or '_lds_' in mn:
                i.wr = set(); i.rd = allr(ops) | {('s', 124)}
            else:
                i.wr = regs_of(ops[0]); i.rd = allr(ops[1:])
        elif mn.startswith(('buffer_store', 'global_store', 'buffer_atomic', 'global_atomic')):
            i.kind = 'vmem'; i.wr = set(); i.rd = allr(ops)
            if mn.startswith('buffer_store'):
                i.sdata = regs_of(ops[0])
            elif mn.startswith('global_store'):
                i.sdata = regs_of(ops[1])
            i.wide_store = mn.endswith(('x3', 'x4'))
        elif mn.startswith('ds_'):
            i.kind = 'ds'
            if mn.startswith(('ds_read', 'ds_bpermute', 'ds_permute', 'ds_swizzle')):
                i.wr = regs_of(ops[0]); i.rd = allr(ops[1:])
            else:
                i.wr = set(); i.rd = allr(ops)
        elif mn.startswith(('s_load', 's_atomic', 's_memrealtime', 's_memtime', 's_buffer_load')):
            i.kind = 'smem'; i.wr = regs_of(ops[0]); i.rd = allr(ops[1:])
        elif mn.startswith('s_'):
            i.kind = 'salu'
            if mn.startswith(('s_cmp', 's_waitcnt', 's_barrier', 's_branch', 's_cbranch', 's_setprio', 's_sleep', 's_endpgm', 's_bitcmp', 's_set_gpr_idx')):
                i.wr = set(); i.rd = allr(ops)
            else:
                i.wr = regs_of(ops[0]); i.rd = allr(ops[1:])
                if 'saveexec' in mn:
                    i.wr |= {('s', 126), ('s', 127)}
        else:
            raise ValueError('unknown instr ' + txt)
        return i

    def need(self, p, c):
        n = 0
        vw = {r for r in p.wr if r[0] in 'va'}
        sw = {r for r in p.wr if r[0] == 's'}
        if p.kind == 'valu':
            isdot = p.mn.startswith('v_dot')
            if c.kind == 'valu':
                if c.dpp and vw & c.rd: n = max(n, 2)
                if c.mn.startswith(('v_readlane', 'v_readfirstlane')) and vw & c.rd: n = max(n, 1)
                if c.mn.startswith('v_permlane') and vw & c.rd: n = max(n, 2)
                if sw & c.rd: n = max(n, 2)
                if sw & c.lanesel: n = max(n, 4)
            if p.mn.startswith(TRANS) and vw & (c.rd | c.wr) and c.kind in ('valu', 'mfma', 'vmem', 'ds'): n = max(n, 1)
            if c.kind == 'mfma' and vw & c.rd: n = max(n, 2)
            if c.kind == 'vmem' and sw & c.rd: n = max(n, 5)
            if c.kind in ('salu', 'smem') and sw & c.rd: n = max(n, 1)
            if isdot and vw & (c.rd | c.wr):
                same_c = False
                if c.mn == p.mn:
                    ops = split_ops(c.txt.split(None, 1)[1])
                    ab = regs_of(ops[1]) | regs_of(ops[2])
                    same_c = not (vw & ab)
                if not same_c: n = max(n, 3)
        if p.kind == 'mfma':
            if c.kind == 'mfma':
                if p.wr & c.srcAB: n = max(n, 8)
                if p.wr & c.srcC and p.wr != c.srcC: n = max(n, 6)
                if p.wr & c.wr and p.wr != c.srcC: n = max(n, 8)
            elif c.kind in ('valu', 'vmem', 'ds'):
                if p.wr & (c.rd | c.wr): n = max(n, 8)
                if c.kind == 'valu' and p.srcC & c.wr: n = max(n, 3)
        if p.kind == 'vmem' and p.wide_store and p.sdata & c.wr:
            n = max(n, 2)
        if p.kind == 'salu' and ('s', 124) in p.wr and ('s', 124) in c.rd and c.kind in ('vmem', 'ds', 'valu'):
            n = max(n, 1)
        return n

    def op(self, txt):
        txt = txt.strip()
        c = self.parse(txt)
        if c.kind != 'nop':
            dist = 0; pad = 0
            for p in reversed(self.hist):
                pad = max(pad, self.need(p, c) - dist)
                dist += p.states
                if dist > 12: break
            if pad > 0:
                nop = self.parse(f's_nop {pad-1}')
                self.lines.append('    ' + nop.txt)
                self.hist.append(nop)
        self.lines.append('    ' + txt)
        self.hist.append(c)
        self.hist = self.hist[-16:]
        return c

    def __call__(self, txt):
        for l in txt.strip().split('\n'):
            l = l.split(';')[0].strip()
            if l:
                self.op(l)

    def vmem(self, txt, tag):
        self.op(txt); self.vm.append(tag)

    def ds(self, txt, tag='x'):
        self.op(txt); self.lg.append(tag)

    def wait_vm(self, *tags):
        idx = max((i for i, t in enumerate(self.vm) if t in tags), default=-1)
        if idx < 0:
            return
        n = len(self.vm) - 1 - idx
        self.op(f's_waitcnt vmcnt({min(n,63)})')
        self.vm = self.vm[idx + 1:]

    def wait_lg(self, *tags):
        idx = max((i for i, t in enumerate(self.lg) if t in tags), default=-1)
        if idx < 0:
            return
        n = len(self.lg) - 1 - idx
        self.op(f's_waitcnt lgkmcnt({min(n,15)})')
        self.lg = self.lg[idx + 1:]

    def wait_vm_all(self):
        self.op('s_waitcnt vmcnt(0)'); self.vm = []

    def wait_lg_all(self):
        self.op('s_waitcnt lgkmcnt(0)'); self.lg = []

    def text(self):
        return '\n'.join(self.lines) + '\n'


class Rec:
    def __init__(self, A):
        self.A = A
        self.q = []

    def __call__(self, txt):
        for l in txt.strip().split('\n'):
            l = l.split(';')[0].strip()
            if l:
                self.q.append((lambda l=l: self.A.op(l)))

    def group(self, txt):
        self.q.append((lambda: self.A(txt)))

    def fn(self, f):
        self.q.append(f)

    def vmem(self, txt, tag):
        self.q.append(lambda: self.A.vmem(txt, tag))

    def ds(self, txt, tag='x'):
        self.q.append(lambda: self.A.ds(txt, tag))

    def wait_vm(self, *t):
        self.q.append(lambda: self.A.wait_vm(*t))

    def wait_lg(self, *t):
        self.q.append(lambda: self.A.wait_lg(*t))

    def label(self, n):
        self.q.append(lambda: self.A.label(n, fence=False))

    def mark(self, gap):
        self.q.append(gap)

    def pop(self, n, now=1 << 30):
        while n > 0 and self.q:
            if isinstance(self.q[0], int):
                if now < self.q[0]:
                    return
                self.q.pop(0); continue
            self.q.pop(0)(); n -= 1

    def flush(self):
        self.pop(1 << 30)
```

```python
import sys, argparse
from asmlib import *

ap = argparse.ArgumentParser()
ap.add_argument('-o', default='parallel_sum__ssm_conv_h3__moe_arch_mod__prompt.s')
for k, d in dict(diag=0, nt=1, pf=1, order=0, r0=6, eper=5, nat=3, qat=6, qper=2, n2=0, n3=4, na2=8, napre=48, pollat=3,
                 g1gap=60, t2gap=140, gx=80, gin=110, wstart=4, wstep=10, fill=2, xtearly=0, wdafter=0, sleep=0, npl=0, ng1=0, gs=90, g3at=0, rpf=0, nom=0, nof=0, wb=0, pt=0, f2b=2, ptl=1, ssat=2, na1=8, al=1, shi=1, wtab=1, xpk=0).items():
    ap.add_argument('--' + k, type=int, default=d)
ap.add_argument('--only', default='')
ap.add_argument('--outflags', default='')
args = ap.parse_args()
NT = ' nt' if args.nt else ''
QFIRST = args.order == 0

KNAME = 'parallel_sum__ssm_conv_h3__moe_arch_mod__prompt_kernel'
HDR = open('parallel_sum__ssm_conv_h3__moe_arch_mod__prompt.s.ref').read().split('; Override launch')[0]

WS_FLG = 0
WS_G1 = 64 << 10
WS_G2 = 128 << 10
WS_OB = 192 << 10
WS_P = 256 << 10
WS_L3 = 1 << 20
WS_DBG = 8 << 20
WS_SIZE = 16 << 20
NONCE_OFF = 0x80
USTR = 4640
L_U = 0
L_HC = 4 * USTR
HCW = 8320
COPY = 4160
L_RED = L_HC + 4 * HCW
L_HS = L_RED + 4096
L_MISC = L_HS + 1024
LDS_SIZE = L_MISC + 256
CODE_PF = 16384
MB = 0x100000

SQ, SK, SV, SSSM, SWGU, SWD, SOUT, SWS, SDBG = 4, 8, 12, 16, 20, 24, 28, 32, 36
pSHIFT, pD, pWR, pWU = 40, 42, 44, 46
pDBG = SDBG
sX, sS, sW, sTA, sTB, sFL, sA, sCNT = 48, 49, 50, 51, 52, 53, 54, 55
sC = 56
sST = 64
sI0, sI1, sK0, sK1, sT0, sT1 = 96, 97, 98, 99, 100, 101
sBC, sT3 = 3, 56
sCLM, sRW, sRV, sPL, sCL, sPO, sWO, sDONE = [sST + 24 + i for i in range(8)]
sG, sY = pSHIFT, pSHIFT + 1
sHS, sOWN = pWU, pWU + 1

vL, vJ, vG, vOT = 1, 2, 3, 4
vHA_, vWDA, vG1A, vL16, vRA, vTAG, vPA0, vPLA, vXSA, vBA, vWA = 5, 6, 7, 8, 9, 10, 11, 12, 13, 14, 15
vMASK = 16
vSTAMP, vD, vT0, vT1 = 20, 21, 22, 23
vSH, vW = 24, 28
vK, vV, vKVP = 36, 56, 72
vAC, vVP = 88, 92
vKP = 168
vQ, vWR, vSS, vSX, vSC = 96, 112, 120, 136, 140
vDD, vM = 208, 148
vPL, vG1 = 36, 56
vACC, vB, NB = 88, 120, 10
vWT = 168
vXS, vXST, vPS, vRD = 24, 32, 34, 35
vXF, vAO, vDG = 36, 52, 68
vXT, vG2, vYA, vG2A = 232, 248, 250, 251
vUD, vPF, vFS, vNON = 252, 253, 254, 255
vONES, vAA = 160, 164
vGP = 144

A = Asm()
HI = 's1' if args.shi else '0xffff0000'
HIL = '0xffff0000'
nstamp = [0]
stubs = []
DPPS = ('quad_perm:[1,0,3,2] row_mask:0xf bank_mask:0xf', 'quad_perm:[2,3,0,1] row_mask:0xf bank_mask:0xf',
        'row_half_mirror row_mask:0xf bank_mask:0xf', 'row_mirror row_mask:0xf bank_mask:0xf',
        'row_bcast:15 row_mask:0xa bank_mask:0xf', 'row_bcast:31 row_mask:0xc bank_mask:0xf')


def stamp(name, skip0=False, X=None):
    if not args.diag or (args.only and name not in args.only.split(',')):
        return
    i = nstamp[0]; nstamp[0] += 1
    print(f'stamp {i}: {name}', file=sys.stderr)

    def emit():
        A.comment(f'stamp {i} {name}')
        if skip0:
            A(f's_cmp_eq_u32 {s(sW)}, 0')
            A(f's_cbranch_scc1 L_st{i}')
            A(f's_memrealtime vcc')
            A('s_waitcnt lgkmcnt(0)')
        else:
            A(f's_memrealtime vcc')
            A.wait_lg_all()
        A.raw(f'    v_writelane_b32 {v(vSTAMP)}, vcc_lo, {i}')
        if skip0:
            A.label(f'L_st{i}', fence=False)
    emit() if X is None else X.fn(emit)


def cstamp(lane):
    if not args.diag:
        return
    A(f's_memtime vcc')
    A.wait_lg_all()
    A.raw(f'    v_writelane_b32 {v(vSTAMP)}, vcc_lo, {lane}')


def unpack(X, dst, src):
    X(f'v_lshlrev_b32 {v(dst)}, 16, {v(src)}')
    X(f'v_and_b32 {v(dst+1)}, {HI}, {v(src)}')


def soff(i):
    return '0' if i == 0 else s(sC + i)


def row_addr(t):
    return soff(t >> 1), (t & 1) * 2048


def checked(X, name, reload_txt, check_txt):
    def emit():
        A.label(f'L_{name}_chk', fence=False)
        A(check_txt)
        A(f's_cmp_lg_u64 vcc, 0')
        A(f's_cbranch_scc1 L_{name}_re')
    emit() if X is A else X.fn(emit)
    stubs.append((name, reload_txt))


def skip(X, n):
    for _ in range(n):
        X.fn(lambda: None)


A.raw(HDR.rstrip())
A.raw(f'; @launch grid=(256,1,1) block=(256,1,1) lds={LDS_SIZE}')
A.raw('.amdgcn_target "amdgcn-amd-amdhsa--gfx950"')
A.raw('.text')
A.raw(f'.globl {KNAME}')
A.raw('.p2align 8')
A.raw(f'.type {KNAME},@function')
A.raw(f'{KNAME}:')
A(f'''
s_cmp_ge_u32 s2, 256
s_cbranch_scc1 L_end
s_load_dwordx2 {s(SQ,2)}, s[0:1], 0
s_load_dwordx2 {s(SK,2)}, s[0:1], 8
s_load_dwordx2 {s(SV,2)}, s[0:1], 16
s_load_dwordx2 {s(pSHIFT,2)}, s[0:1], 24
s_load_dwordx2 {s(SDBG,2)}, s[0:1], 96
s_load_dwordx2 {s(pWR,2)}, s[0:1], 56
s_memrealtime {s(sK0,2)}
s_getpc_b64 {s(sI0,2)}
s_load_dwordx2 {s(SSSM,2)}, s[0:1], 32
s_load_dwordx2 {s(pD,2)}, s[0:1], 40
s_load_dwordx2 {s(SWGU,2)}, s[0:1], 64
s_load_dwordx2 {s(pWU,2)}, s[0:1], 72
s_load_dwordx2 {s(SWD,2)}, s[0:1], 80
s_load_dwordx2 {s(SOUT,2)}, s[0:1], 88
s_load_dwordx2 {s(SWS,2)}, s[0:1], 104
s_lshr_b32 {s(sS)}, s2, 3
s_mov_b32 s1, 0xffff0000
s_and_b32 {s(sT0)}, {s(sS)}, 3
s_lshl_b32 {s(sT0)}, {s(sT0)}, 12
v_lshl_add_u32 {v(vT0)}, v0, 4, {s(sT0)}
''')
if args.pf:
    A.vmem(f'global_load_dword {v(vT1)}, {v(vT0)}, {s(sI0,2)}', 'pf')
A(f'''
s_getreg_b32 {s(sX)}, hwreg(HW_REG_XCC_ID)
s_and_b32 {s(sX)}, {s(sX)}, 7
v_lshrrev_b32 {v(vT0)}, 6, v0
v_and_b32 {v(vL)}, 63, v0
v_readfirstlane_b32 {s(sW)}, {v(vT0)}
v_and_b32 {v(vJ)}, 15, v0
v_bfe_u32 {v(vG)}, v0, 4, 2
s_mov_b32 {s(sCNT)}, 0x40000
''')
for i in range(1, 8):
    A(f's_movk_i32 {s(sC+i)}, {4096*i}')
for srd, size in ((SQ, 4 << 20), (SK, 4 << 20), (SV, 4 << 20), (SSSM, 4 << 20), (SWGU, 1024 * 7168), (SWD, 3584 * 2048), (SOUT, 4 << 20), (SWS, WS_SIZE), (SDBG, 256)):
    A(f's_mov_b32 {s(srd+2)}, {size}')
    A(f's_mov_b32 {s(srd+3)}, 0x20000')
if args.diag:
    A(f'v_mov_b32 {v(vSTAMP)}, 0')
A(f'''
s_lshr_b32 {s(sCL)}, {s(sX)}, 2
s_lshl_b32 {s(sCL)}, {s(sCL)}, 6
s_and_b32 {s(sT3)}, {s(sX)}, 3
s_lshl_b32 {s(sT3)}, {s(sT3)}, 2
s_add_u32 {s(sCL)}, {s(sCL)}, {s(sT3)}
s_lshl_b32 {s(sCLM)}, 1, {s(sS)}
s_mov_b32 {s(sRV)}, 0
s_lshl_b32 {s(sFL)}, {s(sX)}, 9
v_lshlrev_b32 {v(vL16)}, 4, {v(vL)}
''')
A.label('L_restart', fence=False)
A(f'''
s_lshl_b32 {s(sT1)}, {s(sX)}, 10
v_add_u32 {v(vWDA)}, {s(sT1)}, {v(vL16)}
s_lshl_b32 {s(sA)}, {s(sS)}, 2
s_add_u32 {s(sA)}, {s(sA)}, {s(sW)}
s_lshl_b32 {s(sPO)}, {s(sA)}, 15
s_lshl_b32 {s(sT0)}, {s(sX)}, 8
s_add_u32 {s(sPO)}, {s(sPO)}, {s(sT0)}
v_lshl_add_u32 {v(vOT)}, {v(vL)}, 2, {s(sPO)}
v_add_u32 {v(vRA)}, 0xffffe800, {v(vOT)}
v_mov_b32 {v(vG1A)}, {NONCE_OFF}
s_lshl_b32 {s(sT1)}, {s(sX)}, 7
s_add_u32 {s(sRW)}, {s(sT1)}, {s(sA)}
s_lshl_b32 {s(sWO)}, {s(sRW)}, 12
s_waitcnt lgkmcnt(0)
s_or_b32 {s(sT1)}, {s(sW)}, {s(sRV)}
s_cbranch_scc1 L_noclaim
s_cmp_lg_u32 s2, 0
s_cbranch_scc1 L_nonon
s_or_b32 {s(sK1)}, {s(sK0)}, 1
s_atomic_or {s(sK1)}, {s(pDBG,2)}, {NONCE_OFF}
''')
A.label('L_nonon', fence=False)
A(f's_atomic_or {s(sCLM)}, {s(pDBG,2)}, {s(sCL)} glc')
A.label('L_noclaim', fence=False)
E = Rec(A)
NONRE = f'buffer_load_dword {v(vNON)}, {v(vG1A)}, {s(SDBG,4)}, 0 offen sc1'


def qloads(X):
    for i in range(4):
        X.vmem(f'buffer_load_dwordx4 {v(vQ+4*i,4)}, {v(vL16)}, {s(SQ,4)}, {s(sWO)} offen offset:{1024*i}{NT}', 'q')
    for i in range(2):
        X.vmem(f'global_load_dwordx4 {v(vWR+4*i,4)}, {v(vL16)}, {s(pWR,2)} offset:{1024*i}', 'wr')


if QFIRST:
    qloads(A)
A.vmem(f'buffer_load_dword {v(vK+0)}, {v(vRA)}, {s(SK,4)}, 0 offen{NT}', 'k-3')
A.vmem(f'buffer_load_dword {v(vK+1)}, {v(vRA)}, {s(SK,4)}, 0 offen offset:2048{NT}', 'k-2')
A.vmem(f'buffer_load_dword {v(vK+2)}, {v(vRA)}, {s(SK,4)}, {soff(1)} offen{NT}', 'k-1')
A.vmem(f'global_load_dwordx4 {v(vSH,4)}, {v(vWDA)}, {s(pSHIFT,2)}', 'sh')
for t in range(16):
    so, im = row_addr(t)
    X = E if (QFIRST and t >= args.r0) else A
    X.vmem(f'buffer_load_dword {v(vK+3+t)}, {v(vOT)}, {s(SK,4)}, {so} offen offset:{im}{NT}', f'k{t}')
    X.vmem(f'buffer_load_dword {v(vV+t)}, {v(vOT)}, {s(SV,4)}, {so} offen offset:{im}{NT}', f'v{t}')
    if QFIRST and t == args.nat:
        X.vmem(f'buffer_load_dword {v(vPF)}, {v(vG1A)}, {s(SDBG,4)}, 0 offen sc1', 'nonce0')
if not QFIRST:
    E.vmem(NONRE, 'nonce')
    qloads(E)
if args.diag:
    A(f'v_writelane_b32 {v(vSTAMP)}, {s(sK0)}, 63')
A(f'''
s_lshr_b32 {s(sT0)}, {s(sS)}, 1
s_and_b32 {s(sT3)}, {s(sS)}, 1
s_lshl_b32 {s(sPL)}, {s(sT0)}, 2
s_add_u32 {s(sPL)}, {s(sPL)}, {s(sW)}
s_lshl_b32 {s(sPL)}, {s(sPL)}, 1
s_add_u32 {s(sPL)}, {s(sPL)}, {s(sT3)}
s_lshl_b32 {s(sPL)}, {s(sPL)}, 12
s_lshl_b32 {s(sT1)}, {s(sX)}, 19
s_add_u32 {s(sPL)}, {s(sPL)}, {s(sT1)}
s_lshl_b32 {s(sBC)}, {s(sT3)}, 14
s_lshr_b32 {s(sT1)}, {s(sT0)}, 1
s_lshl_b32 {s(sT1)}, {s(sT1)}, 11
s_add_u32 {s(sBC)}, {s(sBC)}, {s(sT1)}
s_and_b32 {s(sT1)}, {s(sT0)}, 1
s_lshl_b32 {s(sT1)}, {s(sT1)}, 7
s_add_u32 {s(sBC)}, {s(sBC)}, {s(sT1)}
s_lshl_b32 {s(sT1)}, {s(sX)}, 8
s_add_u32 {s(sBC)}, {s(sBC)}, {s(sT1)}
s_lshl_b32 {s(sT0)}, {s(sW)}, 18
s_add_u32 {s(sT0)}, {s(sT0)}, {s(sBC)}
v_lshrrev_b32 {v(vT0)}, 3, {v(vL)}
v_and_b32 {v(vXSA)}, 7, {v(vL)}
v_lshlrev_b32 {v(vPLA)}, 15, {v(vT0)}
v_lshl_add_u32 {v(vPLA)}, {v(vXSA)}, 4, {v(vPLA)}
v_add_u32 {v(vPLA)}, {s(sT0)}, {v(vPLA)}
v_lshlrev_b32 {v(vHA_)}, 11, {v(vT0)}
v_bfe_u32 {v(vXSA)}, {v(vL)}, 2, 1
v_lshl_add_u32 {v(vHA_)}, {v(vXSA)}, 7, {v(vHA_)}
v_add_u32 {v(vHA_)}, {s(sPO)}, {v(vHA_)}
v_and_b32 {v(vBA)}, 3, {v(vL)}
v_mul_u32_u24 {v(vUD)}, {USTR}, {v(vBA)}
v_lshl_add_u32 {v(vUD)}, {v(vXSA)}, 4, {v(vUD)}
v_lshlrev_b32 {v(vT0)}, 5, {v(vT0)}
v_sub_u32 {v(vUD)}, {v(vUD)}, {v(vT0)}
v_lshl_add_u32 {v(vHA_)}, {v(vBA)}, 4, {v(vHA_)}
s_lshl_b32 {s(sT0)}, {s(sW)}, 8
s_sub_u32 {s(sT0)}, {L_U+4064-3072}, {s(sT0)}
v_add_u32 {v(vUD)}, {s(sT0)}, {v(vUD)}
s_lshl_b32 {s(sT1)}, {s(sS)}, 2
v_mov_b32 {v(vFS)}, {s(sT1)}
v_and_b32 {v(vT0)}, 1, {v(vG)}
v_lshl_add_u32 {v(vYA)}, {v(vT0)}, 4, {v(vJ)}
v_lshlrev_b32 {v(vYA)}, 15, {v(vYA)}
v_lshrrev_b32 {v(vXSA)}, 1, {v(vG)}
v_lshl_add_u32 {v(vYA)}, {v(vXSA)}, 4, {v(vYA)}
s_lshl_b32 {s(sT0)}, {s(sW)}, 5
s_add_u32 {s(sT0)}, {s(sT0)}, {s(sBC)}
v_add_u32 {v(vYA)}, {s(sT0)}, {v(vYA)}
s_lshl_b32 {s(sT0)}, {s(sA)}, 7
s_add_u32 {s(sT0)}, {s(sT0)}, {WS_G2}
v_lshl_add_u32 {v(vG2A)}, {v(vJ)}, 3, {s(sT0)}
s_mul_i32 {s(sT0)}, {s(sA)}, {28*2048}
s_lshl_b32 {s(sT1)}, {s(sX)}, 8
s_add_u32 {s(sT0)}, {s(sT0)}, {s(sT1)}
v_mul_u32_u24 {v(vWDA)}, {7*2048}, {v(vG)}
v_lshl_add_u32 {v(vWDA)}, {v(vJ)}, 4, {v(vWDA)}
v_add_u32 {v(vWDA)}, {s(sT0)}, {v(vWDA)}
v_lshl_add_u32 {v(vD)}, {v(vL)}, 2, {s(sT1)}
v_lshlrev_b32 {v(vRA)}, 9, {v(vXSA)}
v_lshl_add_u32 {v(vRA)}, {v(vJ)}, 5, {v(vRA)}
v_lshl_add_u32 {v(vRA)}, {v(vT0)}, 4, {v(vRA)}
s_lshl_b32 {s(sT0)}, {s(sW)}, 10
s_add_u32 {s(sT0)}, {s(sT0)}, {L_RED}
v_add_u32 {v(vRA)}, {s(sT0)}, {v(vRA)}
s_mul_i32 {s(sPO)}, {s(sX)}, 57344
s_lshl_b32 {s(sT1)}, {s(sS)}, 11
s_add_u32 {s(sPO)}, {s(sPO)}, {s(sT1)}
s_add_u32 {s(sPO)}, {s(sPO)}, {WS_P}
s_cmp_lt_u32 {s(sS)}, 28
s_cselect_b32 {s(sPO)}, {s(sPO)}, 0x40000000
s_mov_b32 {s(sDONE)}, 0
s_cmp_lg_u32 {s(sRV)}, 0
s_cbranch_scc1 L_noinit
s_cmp_lt_u32 {s(sX)}, 4
s_cselect_b64 {s(SWGU,2)}, {s(SWGU,2)}, {s(pWU,2)}
v_and_b32 {v(vT0)}, 1, {v(vJ)}
v_cmp_eq_u32 vcc, 1, {v(vT0)}
v_mov_b32 {v(vXSA)}, 0xffff
v_mov_b32 {v(vBA)}, {HI}
v_cndmask_b32 {v(vXSA)}, {v(vXSA)}, {v(vBA)}, vcc
v_bfe_u32 {v(vT0)}, {v(vJ)}, 1, 2
''')
for d in range(4):
    A(f'v_cmp_eq_u32 vcc, {d}, {v(vT0)}')
    A(f'v_cndmask_b32 {v(vMASK+d)}, 0, {v(vXSA)}, vcc')
A(f'''
s_mul_i32 {s(sT0)}, {s(sW)}, {USTR}
s_add_u32 {s(sT1)}, {s(sT0)}, {L_U+4096}
v_lshl_add_u32 {v(vT0)}, {v(vL)}, 3, {s(sT1)}
v_mov_b32 {v(vBA)}, 0
v_mov_b32 {v(vWA)}, 0
ds_write_b64 {v(vT0)}, {v(vBA,2)}
v_mov_b32 {v(vT0)}, {L_MISC}
v_mov_b32 {v(vXSA)}, {s(sS)}
ds_write_b32 {v(vT0)}, {v(vXSA)}
''')
A.label('L_noinit', fence=False)
A(f'''
v_and_b32 {v(vPA0)}, 31, {v(vL)}
v_lshlrev_b32 {v(vPA0)}, 2, {v(vPA0)}
v_mul_u32_u24 {v(vWA)}, {16*7168}, {v(vG)}
v_lshl_add_u32 {v(vWA)}, {v(vJ)}, 4, {v(vWA)}
s_mul_i32 {s(sT0)}, {s(sW)}, {USTR}
s_add_u32 {s(sT0)}, {s(sT0)}, {L_U + 16*254 - 512*7}
v_lshlrev_b32 {v(vBA)}, 5, {v(vJ)}
v_sub_u32 {v(vBA)}, {s(sT0)}, {v(vBA)}
v_lshl_add_u32 {v(vBA)}, {v(vG)}, 4, {v(vBA)}
''')
stamp('issued', True)
POLL0 = f'buffer_load_dword {v(vPF)}, {v(vPA0)}, {s(SWS,4)}, {s(sFL)} offen sc1'


def ssm_loads():
    for i in range(4):
        A.vmem(f'buffer_load_dwordx4 {v(vSS+4*i,4)}, {v(vL16)}, {s(SSSM,4)}, {s(sPL)} offen offset:{1024*i}{NT}', 'ss')
        A.vmem(f'buffer_load_dword {v(vSX+i)}, {v(vL16)}, {s(SSSM,4)}, {s(sPL)} offen offset:{1024*i+16}{NT}', 'ss')


PUB = f'''s_atomic_swap_x2 {s(sST+0,2)}, {s(SWS,2)}, {s(sST+6)}
s_atomic_swap_x2 {s(sST+2,2)}, {s(SWS,2)}, {s(sST+7)}
s_atomic_swap_x2 {s(sST+4,2)}, {s(SWS,2)}, {s(sST+7)} offset:8'''


def stats_block():
    A.comment('STATS')
    A.wait_vm('q')
    stamp('q in', True)
    vS = vM; vXW = vM + 2; vSW = vM + 4; vONE = vM + 5; vMb = vM + 6; vMf = vM + 8; vDm = vM + 10; vQ2 = vM + 12; vSd = vM + 16
    S = Rec(A)
    S(f'v_mov_b32 {v(vONE)}, 0x3f803f80')
    for d in range(8):
        for r in (0, 1):
            c = '0' if d == 0 else v(vS + r)
            S(f'v_dot2_f32_bf16 {v(vS+r)}, {v(vQ+8*r+d)}, {v(vONE)}, {c}')
    for r in (0, 1):
        unpack(S, vDD + 16 * r, vQ + 8 * r)
    work = Rec(A)
    for d in range(1, 8):
        for r in (0, 1):
            unpack(work, vDD + 16 * r + 2 * d, vQ + 8 * r + d)
    for mod in DPPS:
        for r in (0, 1):
            S(f'v_add_f32_dpp {v(vS+r)}, {v(vS+r)}, {v(vS+r)} {mod}')
        S.q += work.q[:2]; work.q = work.q[2:]
    for q in ('v_mul_f32 {s}, 0x3a800000, {s}', 'v_cvt_pk_bf16_f32 {mb}, {s}, {s}', 'v_lshlrev_b32 {mf}, 16, {mb}', 'v_sub_f32 {dm}, {s}, {mf}', 'v_readlane_b32 {sg}, {mf}, 63'):
        for r in (0, 1):
            S(q.format(s=v(vS + r), mb=v(vMb + r), mf=v(vMf + r), dm=v(vDm + r), sg=s(sST + 2 * r)))
    S.q += work.q
    for d in range(8):
        for r in (0, 1):
            p = vDD + 16 * r + 2 * d
            S(f'v_pk_add_f32 {v(p,2)}, {v(p,2)}, {s(sST+2*r,2)} op_sel_hi:[1,0] neg_lo:[0,1] neg_hi:[0,1]')
    for d in range(8):
        for r in (0, 1):
            p = vDD + 16 * r + 2 * d
            if d == 0:
                S(f'v_pk_mul_f32 {v(vQ2+2*r,2)}, {v(p,2)}, {v(p,2)}')
            else:
                S(f'v_pk_fma_f32 {v(vQ2+2*r,2)}, {v(p,2)}, {v(p,2)}, {v(vQ2+2*r,2)}')
    S.wait_vm('wr')
    for d in range(8):
        for r in (0, 1):
            c = '0' if d == 0 else v(vXW + r)
            S(f'v_dot2_f32_bf16 {v(vXW+r)}, {v(vQ+8*r+d)}, {v(vWR+d)}, {c}')
        c = '0' if d == 0 else v(vSW)
        S(f'v_dot2_f32_bf16 {v(vSW)}, {v(vWR+d)}, {v(vONE)}, {c}')
    for r in (0, 1):
        S(f'v_add_f32 {v(vS+r)}, {v(vQ2+2*r)}, {v(vQ2+2*r+1)}')
    S(f's_lshl_b32 {s(sST+6)}, {s(sRW)}, 3')
    for r in (0, 1):
        S(f'v_fma_f32 {v(vXW+r)}, -{s(sST+2*r)}, {v(vSW)}, {v(vXW+r)}')
    S(f's_add_u32 {s(sST+6)}, {s(sST+6)}, {WS_G1}')
    for mod in DPPS:
        for r in (vS, vS + 1, vXW, vXW + 1):
            S(f'v_add_f32_dpp {v(r)}, {v(r)}, {v(r)} {mod}')
    seq = ['v_mul_f32 {d}, 0x3a800000, {d}', 'v_fma_f32 {d}, -{m}, {m}, {d}', 'v_max_f32 {d}, 0, {d}', 'v_cvt_pk_bf16_f32 {d}, {d}, {d}',
           'v_lshlrev_b32 {d}, 16, {d}', 'v_add_f32 {d}, 0x3727c5ac, {d}', 'v_cvt_pk_bf16_f32 {d}, {d}, {d}', 'v_lshlrev_b32 {d}, 16, {d}',
           'v_sqrt_f32 {d}, {d}', 'v_cvt_pk_bf16_f32 {d}, {d}, {d}', 'v_lshlrev_b32 {sd}, 16, {d}', 'v_rcp_f32 {d}, {sd}', 'v_mul_f32 {xw}, {xw}, {d}']
    for q in seq:
        for r in (0, 1):
            S(q.format(d=v(vS + r), m=v(vDm + r), sd=v(vSd + r), xw=v(vXW + r)))
    S(f'''
s_mov_b32 {s(sT0)}, 0xffff
v_cvt_pk_bf16_f32 {v(vXW)}, {v(vXW)}, {v(vXW+1)}
v_and_or_b32 {v(vGP+0)}, {v(vMb)}, {s(sT0)}, {v(vSd)}
v_lshrrev_b32 {v(vXW+1)}, 15, {v(vXW)}
v_and_or_b32 {v(vGP+2)}, {v(vMb+1)}, {s(sT0)}, {v(vSd+1)}
v_and_b32 {v(vXW+1)}, 0x10001, {v(vXW+1)}
v_readlane_b32 {s(sST+2)}, {v(vGP+0)}, 63
v_mul_u32_u24 {v(vXW+1)}, 0x7fff, {v(vXW+1)}
v_readlane_b32 {s(sST+4)}, {v(vGP+2)}, 63
v_or_b32 {v(vXW+1)}, 0x80008000, {v(vXW+1)}
s_lshl_b32 {s(sST+7)}, {s(sRW)}, 4
v_xor_b32 {v(vGP+4)}, {v(vXW)}, {v(vXW+1)}
s_add_u32 {s(sST+7)}, {s(sST+7)}, {WS_G2}
v_readlane_b32 {s(sST+0)}, {v(vGP+4)}, 63
''')
    while S.q:
        if QFIRST:
            E.pop(1)
        S.pop(args.eper)
    if QFIRST:
        E.flush()
        A.vmem(NONRE, 'nonce')
        if args.ssat == 1:
            ssm_loads()
        A.wait_vm('nonce0')
        A(f'v_readfirstlane_b32 {s(sST+1)}, {v(vPF)}')
    else:
        A(f's_mov_b32 {s(sST+1)}, {s(sTA)}')
    A(f's_mov_b32 {s(sST+3)}, {s(sST+1)}')
    A(f's_mov_b32 {s(sST+5)}, {s(sST+1)}')
    stamp('stats done', True)
    if QFIRST:
        A(f's_cmp_eq_u32 {s(sST+1)}, 0')
        A('s_cbranch_scc1 L_nopub')
    A(PUB)
    if QFIRST:
        A.label('L_nopub', fence=False)


def kv_block():
    A.comment('KV')
    A.wait_vm('sh')
    A(f'''
v_lshlrev_b32 {v(vW+0)}, 16, {v(vSH+0)}
v_lshlrev_b32 {v(vW+1)}, 16, {v(vSH+2)}
v_and_b32 {v(vW+2)}, {HI}, {v(vSH+0)}
v_and_b32 {v(vW+3)}, {HI}, {v(vSH+2)}
v_lshlrev_b32 {v(vW+4)}, 16, {v(vSH+1)}
v_lshlrev_b32 {v(vW+5)}, 16, {v(vSH+3)}
v_and_b32 {v(vW+6)}, {HI}, {v(vSH+1)}
v_and_b32 {v(vW+7)}, {HI}, {v(vSH+3)}
''')
    KP = lambda t: vKP + 2 * (t + 3)
    for t in (-3, -2, -1):
        unpack(A, KP(t), vK + 3 + t)
    for t in range(0, 16, 2):
        A.wait_vm(f'v{t+1}')
        if not QFIRST:
            if t == 0:
                E.pop(1)
            if t >= args.qat:
                E.pop(args.qper)
        for u in (0, 1):
            A(f'v_pk_mul_f32 {v(vAC+2*u,2)}, {v(KP(t+u-3),2)}, {v(vW+6,2)}')
        for u in (0, 1):
            unpack(A, KP(t + u), vK + 3 + t + u)
        for jj in (2, 1, 0):
            for u in (0, 1):
                A(f'v_pk_fma_f32 {v(vAC+2*u,2)}, {v(KP(t+u-jj),2)}, {v(vW+2*jj,2)}, {v(vAC+2*u,2)}')
            if jj:
                unpack(A, vVP + 2 * (jj - 1), vV + t + jj - 1)
        for u in (0, 1):
            A(f'v_pk_mul_f32 {v(vAC+2*u,2)}, {v(vAC+2*u,2)}, {v(vVP+2*u,2)}')
        dw = (15 - (t + 1)) // 2
        for e in (0, 1):
            A(f'v_cvt_pk_bf16_f32 {v(vKVP+8*e+dw)}, {v(vAC+2+e)}, {v(vAC+e)}')
        if args.ssat == 2 and t == 2:
            ssm_loads()
        if t == 6 or t == 14:
            hh = 1 if t == 6 else 0
            for e in (0, 1):
                A.vmem(f'buffer_store_dwordx4 {v(vKVP+8*e+4*hh,4)}, {v(vHA_)}, {s(SOUT,4)}, {soff(4*e)} offen offset:{hh*64}', 'hst')
    stamp('kv stored', True)


def hc_block():
    A.comment('HC')
    A(f'''
s_mul_i32 {s(sT0)}, {s(sW)}, {HCW}
s_add_u32 {s(sT0)}, {s(sT0)}, {L_HC}
v_add_u32 {v(vXSA)}, {s(sT0)}, {v(vL16)}
v_and_b32 {v(vT1)}, 1, {v(vJ)}
v_xor_b32 {v(vT1)}, 1, {v(vT1)}
v_mul_u32_u24 {v(vT1)}, {COPY}, {v(vT1)}
v_add_u32 {v(vT0)}, 1, {v(vJ)}
v_lshrrev_b32 {v(vT0)}, 1, {v(vT0)}
v_lshl_add_u32 {v(vT1)}, {v(vT0)}, 2, {v(vT1)}
v_lshl_add_u32 {v(vT1)}, {v(vG)}, 4, {v(vT1)}
v_add_u32 {v(vAA)}, {s(sT0)}, {v(vT1)}
v_add_u32 {v(vAA+1)}, 1024, {v(vAA)}
v_add_u32 {v(vAA+2)}, 2048, {v(vAA)}
v_add_u32 {v(vAA+3)}, 3072, {v(vAA)}
v_lshrrev_b32 {v(vT0)}, 3, {v(vJ)}
v_mul_u32_u24 {v(vT0)}, {COPY}, {v(vT0)}
v_and_b32 {v(vT1)}, 7, {v(vJ)}
v_lshl_add_u32 {v(vT0)}, {v(vT1)}, 2, {v(vT0)}
v_add_u32 {v(vT0)}, {s(sT0)}, {v(vT0)}
v_mov_b32 {v(vT1)}, 0
''')
    for d in range(4):
        A(f'v_mov_b32 {v(vONES+d)}, -1')
    A.wait_vm('ss')
    stamp('ss in', True)
    A(f'''
v_readfirstlane_b32 {s(sT1)}, {v(vSS)}
s_lshl_b32 {s(sT1)}, {s(sT1)}, 16
v_writelane_b32 {v(vT1)}, {s(sT1)}, 15
s_mov_b64 exec, 0xffff
''')
    A.ds(f'ds_write_b32 {v(vT0)}, {v(vT1)}')
    A('s_mov_b64 exec, -1')
    for i in range(4):
        A.ds(f'ds_write_b128 {v(vXSA)}, {v(vSS+4*i,4)} offset:{32+1024*i}')
        c = vSC + 4 * (i & 1)
        for d in range(4):
            hi = vSS + 4 * i + d + 1 if d < 3 else vSX + i
            A(f'v_alignbit_b32 {v(c+d)}, {v(hi)}, {v(vSS+4*i+d)}, 16')
        A.ds(f'ds_write_b128 {v(vXSA)}, {v(c,4)} offset:{COPY+32+1024*i}')


def flag_store(phase):
    l = A.newlabel('L_nf')
    A(f'''
s_cmp_lg_u32 {s(sW)}, 0
s_cbranch_scc1 {l}
s_mov_b64 exec, 1
buffer_store_dword {v(vNON)}, {v(vFS)}, {s(SWS,4)}, {s(sFL)} offen offset:{phase*128}
s_mov_b64 exec, -1
''')
    A.label(l, fence=False)


wi = [0]


def wl(n, X=A):
    for _ in range(n):
        i = wi[0]
        if i < 16:
            if args.wtab:
                X.vmem(f'buffer_load_dwordx4 {v(vWT+4*i,4)}, {v(vWA)}, {s(SWGU,4)}, {s(sST+8+i)} offen{NT}', f'w{i}')
            else:
                X.vmem(f'buffer_load_dwordx4 {v(vWT+4*i,4)}, {v(vWA)}, {s(SWGU,4)}, {s(sWO)} offen{NT}', f'w{i}')
                X(f's_add_u32 {s(sWO)}, {s(sWO)}, 7168')
            wi[0] += 1


def xtload(X, t):
    so, im = row_addr(t)
    X.vmem(f'buffer_load_dword {v(vXT+t)}, {v(vOT)}, {s(SQ,4)}, {so} offen offset:{im}{NT}', 'xt')


AR = Rec(A)
for q_ in [rho + 8 * p for rho in range(8) for p in range(8)]:
    ad = vAA + (q_ >> 4); o = 16 * (q_ & 15)
    AR.ds(f'ds_read2_b32 {a(4*q_,2)}, {v(ad)} offset0:{o} offset1:{o+1}', f'A{q_}')
    AR.ds(f'ds_read2_b32 {a(4*q_+2,2)}, {v(ad)} offset0:{o+2} offset1:{o+3}', f'A{q_}')


def pretouch():
    A(f'''
v_bfe_u32 {v(vT0)}, {v(vL)}, 3, 2
v_lshlrev_b32 {v(vT0)}, 20, {v(vT0)}
v_and_b32 {v(vT1)}, 7, {v(vL)}
v_lshl_add_u32 {v(vT0)}, {v(vT1)}, 15, {v(vT0)}
s_lshl_b32 {s(sT0)}, {s(sW)}, 18
s_add_u32 {s(sT0)}, {s(sT0)}, {s(sBC)}
''')
    A.vmem(f'buffer_load_dword {v(vG2)}, {v(vT0)}, {s(SOUT,4)}, {s(sT0)} offen sc1', 'pt')


if QFIRST:
    stats_block()
if args.pt == 3:
    pretouch()
kv_block()
A.wait_vm('nonce')
checked(A, 'nonce', NONRE, f'v_cmp_eq_u32 vcc, 0, {v(vNON)}')
A(f'v_readfirstlane_b32 {s(sTA)}, {v(vNON)}')
if QFIRST:
    A(f'''
s_cmp_lg_u32 {s(sST+1)}, 0
s_cbranch_scc1 L_pubd
s_mov_b32 {s(sST+1)}, {s(sTA)}
s_mov_b32 {s(sST+3)}, {s(sTA)}
s_mov_b32 {s(sST+5)}, {s(sTA)}
{PUB}
''')
    A.label('L_pubd', fence=False)
A(f'''
s_mul_i32 {s(sTB)}, {s(sTA)}, 0x9e3779b1
v_lshlrev_b32 {v(vG1A)}, 5, v0
v_add_u32 {v(vG1A)}, {WS_G1}, {v(vG1A)}
v_and_b32 {v(vT0)}, 1, v0
v_lshlrev_b32 {v(vRD)}, 9, {v(vT0)}
v_lshrrev_b32 {v(vT1)}, 1, v0
v_lshl_add_u32 {v(vRD)}, {v(vT1)}, 2, {v(vRD)}
v_add_u32 {v(vRD)}, {L_RED}, {v(vRD)}
v_cmp_eq_u32 vcc, 1, {v(vT0)}
v_mov_b32 {v(vT1)}, {s(sTB)}
v_lshlrev_b32 {v(vPS)}, 3, v0
v_cndmask_b32 {v(vTAG)}, {v(vNON)}, {v(vT1)}, vcc
''')
if args.ssat < 3:
    hc_block()
A.wait_vm('hst')
stamp('ack0', True)
A('s_barrier')
flag_store(0)
stamp('flag0 out', True)
E.flush()
if args.pt == 1:
    pretouch()
if args.ssat == 3:
    ssm_loads()
if args.pt == 2:
    pretouch()
A(f'''
s_and_b32 {s(sT0)}, {s(sX)}, 3
s_lshl_b32 {s(sT0)}, {s(sT0)}, 2
s_add_u32 {s(sT0)}, {s(sT0)}, {s(sW)}
s_mul_i32 {s(sWO)}, {s(sT0)}, {64*7168}
s_lshl_b32 {s(sT1)}, {s(sS)}, 8
s_add_u32 {s(sWO)}, {s(sWO)}, {s(sT1)}
s_cmp_lt_u32 {s(sS)}, 28
s_cselect_b32 {s(sWO)}, {s(sWO)}, 0x40000000
''')
if args.wtab:
    for i in range(16):
        A(f's_add_u32 {s(sST+8+i)}, {s(sWO)}, {7168*i}')
wl(args.n2)
if args.xtearly == 1:
    for t_ in range(16):
        xtload(A, t_)
if args.pollat == 1:
    A.vmem(POLL0, 'poll')
if not QFIRST:
    stats_block()
if args.pollat == 2:
    A.vmem(POLL0, 'poll')
if args.ssat == 3:
    hc_block()
AR.pop(2 * args.na1)
if args.pollat == 3:
    A.vmem(POLL0, 'poll')
    AR.pop(2 * args.na1)
stamp('HC done', True)
G1RE = f'''buffer_load_dwordx4 {v(vG1,4)}, {v(vG1A)}, {s(SWS,4)}, 0 offen sc1
buffer_load_dwordx4 {v(vG1+4,4)}, {v(vG1A)}, {s(SWS,4)}, 0 offen offset:16 sc1'''
A.label('L_pollw', fence=False)
A(f'''
s_waitcnt vmcnt(0)
v_cmp_ne_u32 vcc, {s(sTA)}, {v(vPF)}
s_cmp_lg_u64 vcc, 0
s_cbranch_scc1 L_pollbad
''')
A.vm = []
if QFIRST:
    for l in G1RE.split('\n'):
        A.vmem(l, 'g1')
for i in range(4):
    if i:
        A(f's_mov_b32 {s(sT0)}, {MB*i}')
    A.vmem(f'buffer_load_dwordx4 {v(vPL+4*i,4)}, {v(vPLA)}, {s(SOUT,4)}, {s(sT0) if i else 0} offen sc1', f'pl{i}')
stamp('flag0 seen', True)
AR.pop(2 * args.na2)
A('s_barrier')
rest = args.napre - (128 - len(AR.q)) // 2
for i in range(args.n3):
    wl(1)
    AR.pop(2 * (rest // args.n3))
stamp('w issued', True)


def top2_local(X):
    X.wait_vm('g1')
    checked(X, 'g1', G1RE, f'''
v_xor_b32 {v(vT0)}, {s(sTA)}, {v(vG1+1)}
v_xor_b32 {v(vT1)}, {s(sTA)}, {v(vG1+3)}
v_xor_b32 {v(64)}, {s(sTA)}, {v(vG1+5)}
v_xor_b32 {v(65)}, {s(sTA)}, {v(vG1+7)}
v_or3_b32 {v(vT0)}, {v(vT0)}, {v(vT1)}, {v(64)}
v_or_b32 {v(vT0)}, {v(vT0)}, {v(65)}
v_cmp_ne_u32 vcc, 0, {v(vT0)}''')
    stamp('g1 ok', X=None if X is A else X)
    vH, vLo, vKx, vCd = 64, 65, vT0, vT1
    X(f'''
s_mov_b32 {s(sT0)}, {HI}
v_lshlrev_b32 {v(vCd)}, 3, v0
v_sub_u32 {v(vCd)}, 2047, {v(vCd)}
''')
    for n in range(8):
        src = vG1 + 2 * (n >> 1)
        dst = vH if n == 0 else vKx
        if n % 2 == 0:
            X(f'v_lshl_or_b32 {v(dst)}, {v(src)}, 16, {v(vCd)}')
        else:
            X(f'v_and_or_b32 {v(dst)}, {v(src)}, {s(sT0)}, {v(vCd)}')
        if n < 7:
            X(f'v_subrev_u32 {v(vCd)}, 1, {v(vCd)}')
        if n == 1:
            X(f'v_min_u32 {v(vLo)}, {v(vH)}, {v(vKx)}')
            X(f'v_max_u32 {v(vH)}, {v(vH)}, {v(vKx)}')
        elif n > 1:
            X(f'v_med3_u32 {v(vLo)}, {v(vH)}, {v(vLo)}, {v(vKx)}')
            X(f'v_max_u32 {v(vH)}, {v(vH)}, {v(vKx)}')
    for n, mod in enumerate(DPPS[:4]):
        X(f'v_min_u32_dpp {v(vKx)}, {v(vH)}, {v(vH)} {mod}')
        X(f'v_max_u32_dpp {v(vH)}, {v(vH)}, {v(vH)} {mod}')
        X(f'v_max_u32_dpp {v(vLo)}, {v(vLo)}, {v(vLo)} {mod}')
        X(f'v_max_u32 {v(vLo)}, {v(vLo)}, {v(vKx)}')
    X(f'v_lshrrev_b32 {v(vT0)}, 4, v0')
    X(f'v_lshlrev_b32 {v(vT0)}, 3, {v(vT0)}')
    X.ds(f'ds_write_b64 {v(vT0)}, {v(vH,2)} offset:{L_MISC+64}', 't2w')


def top2_merge(X):
    vH, vLo, vKx = 64, 65, vT0
    X(f'v_lshlrev_b32 {v(vT1)}, 3, {v(vJ)}')
    X.ds(f'ds_read_b64 {v(vH,2)}, {v(vT1)} offset:{L_MISC+64}', 't2')
    X(f'''
s_and_b32 {s(sT0)}, {s(sX)}, 3
s_lshl_b32 {s(sT0)}, {s(sT0)}, 2
s_add_u32 {s(sT0)}, {s(sT0)}, {s(sW)}
s_lshl_b32 {s(sT0)}, {s(sT0)}, 7
v_cmp_lt_u32 vcc, 7, {v(vJ)}
''')
    skip(X, 4)
    X.wait_lg('t2')
    for n, mod in enumerate(DPPS[:4]):
        X(f'v_min_u32_dpp {v(vKx)}, {v(vH)}, {v(vH)} {mod}')
        X(f'v_max_u32_dpp {v(vH)}, {v(vH)}, {v(vH)} {mod}')
        X(f'v_max_u32_dpp {v(vLo)}, {v(vLo)}, {v(vLo)} {mod}')
        X(f'v_max_u32 {v(vLo)}, {v(vLo)}, {v(vKx)}')
    X(f'''
v_cndmask_b32 {v(vT0)}, {v(vH)}, {v(vLo)}, vcc
v_not_b32 {v(vT0)}, {v(vT0)}
v_and_b32 {v(vT0)}, 0x7ff, {v(vT0)}
v_lshlrev_b32 {v(vXSA)}, 3, {v(vT0)}
v_lshlrev_b32 {v(vT0)}, 11, {v(vT0)}
v_lshl_add_u32 {v(vT0)}, {v(vG)}, 5, {v(vT0)}
''')
    X.vmem(f'buffer_load_dwordx4 {v(vXS,4)}, {v(vT0)}, {s(SQ,4)}, {s(sT0)} offen', 'xs')
    X.vmem(f'buffer_load_dwordx4 {v(vXS+4,4)}, {v(vT0)}, {s(SQ,4)}, {s(sT0)} offen offset:16', 'xs')
    X(f'v_add_u32 {v(vXSA)}, {WS_G2}, {v(vXSA)}')
    X.vmem(XSRE, 'xs')
    stamp('xs issued', X=X)
    X(f'v_readfirstlane_b32 {s(sK0)}, {v(vH)}')
    X(f'v_readfirstlane_b32 {s(sK1)}, {v(vLo)}')


XSRE = f'buffer_load_dwordx2 {v(vXST,2)}, {v(vXSA)}, {s(SWS,4)}, 0 offen sc1'
w_at_g1 = [wi[0]]
if QFIRST:
    top2_local(A)
    wl(args.ng1)
for i in range(4):
    A.wait_vm(f'pl{i}')
    A.ds(f'ds_write_b128 {v(vUD)}, {v(vPL+4*i,4)} offset:{1024*(3-i)}')
    wl(args.npl)
stamp('payload in')
A.wait_lg_all()
A('s_barrier')
stamp('U ready')
cstamp(50)
frags = [(rho, m) for rho in range(8) for m in range(8)]


def bread(idx):
    rho, m = frags[idx]
    A.ds(f'ds_read_b128 {v(vB+4*(idx%NB),4)}, {v(vBA)} offset:{512*(7-m)+64*rho}', f'B{idx}')


DEPTH = NB - 1
for idx in range(DEPTH):
    bread(idx)

F = Rec(A)
M = Rec(A)
sent_done = []
for i in range(4):
    if i:
        M(f's_mov_b32 {s(sPL)}, {MB*i}')
    M.vmem(f'buffer_store_dwordx4 {v(vONES,4)}, {v(vPLA)}, {s(SOUT,4)}, {s(sPL) if i else 0} offen', 'sent')
if not QFIRST:
    F.mark(args.g1gap)
    for l in G1RE.split('\n'):
        F.vmem(l, 'g1')
    F.mark(args.t2gap)
    top2_local(F)
    skip(F, 6)
    F.wait_lg('t2w')
    F('s_barrier')
top2_merge(F)
F.mark(args.gs)
F.wait_vm('sent')
F('s_barrier')
F.fn(lambda: flag_store(1))
F.fn(lambda: sent_done.append(1))
F.mark(args.gx)
F.wait_vm('xs')
checked(F, 'xs', XSRE, f'v_cmp_ne_u32 vcc, {s(sTA)}, {v(vXST+1)}')
stamp('xs in', X=F)
F(f'''
v_and_b32 {v(vXST+1)}, {HI}, {v(vXST)}
v_lshlrev_b32 {v(vXST)}, 16, {v(vXST)}
v_rcp_f32 {v(vXST+1)}, {v(vXST+1)}
''')
for d in range(8):
    unpack(F, vXF + 2 * d, vXS + d)
F(f'v_mul_f32 {v(vXST)}, {v(vXST)}, {v(vXST+1)}')
if args.xpk:
    for d in range(8):
        F(f'v_pk_fma_f32 {v(vXF+2*d,2)}, {v(vXF+2*d,2)}, {v(vXST,2)}, {v(vXST,2)} op_sel:[0,1,0] op_sel_hi:[1,1,0] neg_lo:[0,0,1] neg_hi:[0,0,1]')
else:
    for i in range(16):
        F(f'v_fma_f32 {v(vXF+i)}, {v(vXF+i)}, {v(vXST+1)}, -{v(vXST)}')
for i in range(16):
    F(f'v_cvt_pk_bf16_f32 {v(vXF+i)}, {v(vXF+i)}, {v(vXF+i)}')
F.mark(args.gin)
for i in range(16):
    ao = vAO + 4 * (i & 3)
    for d in range(4):
        F(f'v_and_b32 {v(ao+d)}, {v(vXF+i)}, {v(vMASK+d)}')
    if i >= 1:
        c = '0' if i == 1 else v(vDG, 4)
        F.fn(lambda i=i, c=c: (A.wait_vm(f'w{i-1}'), A(f'v_mfma_f32_16x16x32_bf16 {v(vDG,4)}, {v(vAO+4*((i-1)&3),4)}, {v(vWT+4*(i-1),4)}, {c}')))
skip(F, 2)
F.fn(lambda: (A.wait_vm('w15'), A(f'v_mfma_f32_16x16x32_bf16 {v(vDG,4)}, {v(vAO+12,4)}, {v(vWT+60,4)}, {v(vDG,4)}')))
stamp('gu done', X=F)
skip(F, 6)
F.ds(f'ds_write_b128 {v(vRA)}, {v(vDG,4)}', 'rw')
skip(F, 4)
F.wait_lg('rw')
F('s_barrier')
F.ds(f'ds_read2st64_b32 {v(vDG,2)}, {v(vRD)} offset0:0 offset1:4', 'r')
F.ds(f'ds_read2st64_b32 {v(vDG+2,2)}, {v(vRD)} offset0:8 offset1:12', 'r')
skip(F, 6)
F.wait_lg('r')
F(f'''
v_add_f32 {v(vDG)}, {v(vDG)}, {v(vDG+1)}
v_add_f32 {v(vDG+2)}, {v(vDG+2)}, {v(vDG+3)}
v_mov_b32 {v(vDG+1)}, {v(vTAG)}
v_add_f32 {v(vDG)}, {v(vDG)}, {v(vDG+2)}
''')
F.vmem(f'buffer_store_dwordx2 {v(vDG,2)}, {v(vPS)}, {s(SWS,4)}, {s(sPO)} offen sc1', 'pst')
stamp('P out', X=F)


def wdload(X, i):
    so, im = row_addr(i)
    X.vmem(f'buffer_load_dwordx4 {a(32*i,4)}, {v(vWDA)}, {s(SWD,4)}, {so} offen offset:{im}{NT}', 'wd')


G2RE = f'buffer_load_dwordx2 {v(vG2,2)}, {v(vG2A)}, {s(SWS,4)}, 0 offen sc1'
gap = args.wstart
while wi[0] < 16:
    M.mark(gap); gap += args.wstep
    wl(1, M)
gap = max(gap, 40)
M.mark(gap)
M.vmem(G2RE, 'g2')
M.vmem(f'global_load_dword {v(vD)}, {v(vD)}, {s(pD,2)}', 'g2')
XL = Rec(A)
for t in range(16):
    if args.xtearly == 0:
        if t % 4 == 0:
            M.mark(gap); gap += args.wstep
        xtload(M, t)
    elif args.xtearly == 2:
        xtload(XL, t)
for i in range(7):
    if args.wdafter:
        wdload(F, i)
    else:
        M.mark(gap); gap += args.wstep
        wdload(M, i)
if args.xtearly == 2:
    for t in range(4):
        if args.wdafter:
            F.q += XL.q[4*t:4*t+4]
        else:
            M.mark(gap); gap += args.wstep
            M.q += XL.q[4*t:4*t+4]
if args.ptl:
    M(f's_lshl_b32 {s(sPL)}, {s(sRW)}, 11')
    M(f's_add_u32 {s(sPL)}, {s(sPL)}, {WS_L3}')
    M(f'v_lshlrev_b32 {v(vPF)}, 7, {v(vJ)}')
    M.vmem(f'buffer_load_dword {v(vPF)}, {v(vPF)}, {s(SWS,4)}, {s(sPL)} offen sc1', 'ptl')
vXNf, vC0, vXf, vYL, vP = 168, 200, 136, 88, 104
vPA, vPA2, vHS, vLA, vIA, vYR = 24, 25, 26, 27, 28, 29
vDf, vONE2 = 30, 32
F2 = Rec(A)
F2(f'''
v_lshrrev_b32 {v(vT0)}, 1, {v(vL)}
v_min_u32 {v(vT0)}, 27, {v(vT0)}
v_and_b32 {v(vT1)}, 1, {v(vL)}
v_mul_u32_u24 {v(vPA)}, {4*57344}, {v(vT1)}
v_lshl_add_u32 {v(vPA)}, {v(vT0)}, 4, {v(vPA)}
s_mul_i32 {s(sT0)}, {s(sA)}, {28*16}
s_add_u32 {s(sT0)}, {s(sT0)}, {WS_P}
v_add_u32 {v(vPA)}, {s(sT0)}, {v(vPA)}
v_add_u32 {v(vPA2)}, {2*57344}, {v(vPA)}
v_mul_u32_u24 {v(vHS)}, 37, {v(vT0)}
v_lshrrev_b32 {v(vHS)}, 8, {v(vHS)}
v_add_u32 {v(vHS)}, {v(vHS)}, {v(vT0)}
v_lshlrev_b32 {v(vHS)}, 2, {v(vHS)}
v_lshl_add_u32 {v(vHS)}, {v(vT1)}, 7, {v(vHS)}
s_lshl_b32 {s(sHS)}, {s(sW)}, 8
s_add_u32 {s(sHS)}, {s(sHS)}, {L_HS}
v_add_u32 {v(vHS)}, {s(sHS)}, {v(vHS)}
v_and_b32 {v(vT0)}, 3, {v(vL)}
v_lshl_add_u32 {v(vYR)}, {v(vT0)}, 4, {v(vHA_)}
v_and_b32 {v(vT0)}, 1, {v(vG)}
v_lshl_add_u32 {v(vLA)}, {v(vJ)}, 1, {v(vT0)}
v_lshlrev_b32 {v(vLA)}, 13, {v(vLA)}
v_lshrrev_b32 {v(vT0)}, 1, {v(vG)}
v_lshl_add_u32 {v(vLA)}, {v(vT0)}, 5, {v(vLA)}
s_lshl_b32 {s(sT0)}, {s(sA)}, 6
s_lshl_b32 {s(sT1)}, {s(sX)}, 18
s_add_u32 {s(sT1)}, {s(sT1)}, {WS_L3}
s_add_u32 {s(sT0)}, {s(sT0)}, {s(sT1)}
v_add_u32 {v(vLA)}, {s(sT0)}, {v(vLA)}
s_lshl_b32 {s(sT0)}, {s(sS)}, 13
s_add_u32 {s(sT0)}, {s(sT0)}, {s(sT1)}
v_add_u32 {v(vIA)}, {s(sT0)}, {v(vL16)}
s_mov_b32 {s(sG)}, 0
s_mov_b32 {s(sY)}, 0
s_not_b32 {s(sI0)}, {s(sK0)}
s_and_b32 {s(sI0)}, {s(sI0)}, 0x7ff
s_not_b32 {s(sI1)}, {s(sK1)}
s_and_b32 {s(sI1)}, {s(sI1)}, 0x7ff
v_mov_b32 {v(vONE2)}, 1.0
v_mov_b32 {v(vONE2+1)}, 1.0
s_mov_b32 {s(sT3)}, 57344
''')

nm = 0
for idx, (rho, m) in enumerate(frags):
    tags = [f'B{idx}'] + ([f'A{rho+8*p}' for p in range(8)] if m == 0 else [])
    if m == 0:
        assert 128 - len(AR.q) >= 16 * (rho + 1), 'A frag not issued'
    if m >= 5 and idx + 1 < 64 and m % 2 == 1 and m < 7:
        tags.append(f'B{idx+1}')
    A.wait_lg(*tags)
    for p in range(8 - m):
        n = m + p; q = rho + 8 * p
        c = '0' if (rho == 0 and m == 0) else v(vACC + 4 * n, 4)
        A(f'v_mfma_f32_16x16x32_bf16 {v(vACC+4*n,4)}, {a(4*q,4)}, {v(vB+4*(idx%NB),4)}, {c}')
        nm += 1
        budget = args.fill
        if p == 0 and idx + DEPTH < 64:
            bread(idx + DEPTH); budget -= 1
        if p == 7 - m:
            budget -= 1
        if AR.q and nm % 2 == 0:
            AR.pop(1); budget -= 1
        if budget > 0 and not args.nom:
            n0 = len(M.q); M.pop(1, nm)
            if len(M.q) != n0:
                budget -= 1
        if budget > 0 and not args.nof:
            if F.q:
                F.pop(budget, nm)
            else:
                F2.pop(budget - 2 + args.f2b)
if not args.diag:
    print('left F', len(F.q), 'M', len(M.q), 'F2', len(F2.q), file=sys.stderr)
cstamp(51)
stamp('mfma done')
vY = vB
for n in range(8):
    A(f'v_cvt_pk_bf16_f32 {v(vY+2*n)}, {v(vACC+4*n)}, {v(vACC+4*n+1)}')
    A(f'v_cvt_pk_bf16_f32 {v(vY+2*n+1)}, {v(vACC+4*n+2)}, {v(vACC+4*n+3)}')
for n in range(16):
    A(f'v_min_u32 {v(vY+n)}, -2, {v(vY+n)}')
for pr in range(4):
    A(f'v_permlane16_swap_b32 {v(vY+4*pr)}, {v(vY+4*pr+2)}')
    A(f'v_permlane16_swap_b32 {v(vY+4*pr+1)}, {v(vY+4*pr+3)}')
if args.nom:
    M.pop(7)
while not sent_done:
    F.pop(1)
for pr in range(4):
    if pr:
        A(f's_mov_b32 {s(sPL)}, {MB*pr}')
    A.vmem(f'buffer_store_dwordx4 {v(vY+4*pr,4)}, {v(vYA)}, {s(SOUT,4)}, {s(sPL) if pr else 0} offen', 'yst')
POLL1 = f'buffer_load_dword {v(vFS)}, {v(vPA0)}, {s(SWS,4)}, {s(sFL)} offen offset:128 sc1'
A.vmem(POLL1, 'poll1')
stamp('y out')
M.flush()
F.flush()
F2.flush()
G3RE = '\n'.join(f'buffer_load_dwordx4 {v(vP+4*kq,4)}, {v(vPA+(kq>>1))}, {s(SWS,4)}, {s(sT3) if kq&1 else 0} offen sc1' for kq in range(4))
A.wait_vm('g2', 'xt')
checked(A, 'g2', G2RE, f'v_cmp_ne_u32 vcc, {s(sTA)}, {v(vG2+1)}')
A(f'''
v_and_b32 {v(vT0)}, {HI}, {v(vG2)}
v_lshlrev_b32 {v(vT1)}, 16, {v(vG2)}
v_rcp_f32 {v(vT0)}, {v(vT0)}
''')
unpack(A, vDf, vD)
A(f'v_mul_f32 {v(vT1)}, {v(vT1)}, {v(vT0)}')
for l in G3RE.split('\n'):
    A.vmem(l, 'g3')
for t in range(16):
    A(f'v_readlane_b32 {s(sST+2*t)}, {v(vT0)}, {t}')
    A(f'v_readlane_b32 {s(sST+2*t+1)}, {v(vT1)}, {t}')
for t in range(16):
    unpack(A, vXf + 2 * t, vXT + t)
for t in range(16):
    A(f'v_pk_fma_f32 {v(vXNf+2*t,2)}, {v(vXf+2*t,2)}, {s(sST+2*t,2)}, {s(sST+2*t,2)} op_sel:[0,0,1] op_sel_hi:[1,0,1] neg_lo:[0,0,1] neg_hi:[0,0,1]')
for e in (0, 1):
    for dw in range(8):
        A(f'v_lshlrev_b32 {v(vC0+2*(15-2*dw)+e)}, 16, {v(vKVP+8*e+dw)}')
        A(f'v_and_b32 {v(vC0+2*(14-2*dw)+e)}, {HI}, {v(vKVP+8*e+dw)}')
A.wait_vm('poll1')
checked(A, 'poll1', POLL1, f'v_cmp_ne_u32 vcc, {s(sTA)}, {v(vFS)}')
YRE = '\n'.join(f'buffer_load_dwordx4 {v(vYL+8*e+4*hf,4)}, {v(vYR)}, {s(SOUT,4)}, {soff(4*e)} offen offset:{hf*16} sc1' for hf in (0, 1) for e in (0, 1))
for l in YRE.split('\n'):
    A.vmem(l, 'y')
for t in range(16):
    A(f'v_pk_fma_f32 {v(vC0+2*t,2)}, {v(vC0+2*t,2)}, {v(vDf,2)}, {v(vONE2,2)}')
for t in range(16):
    A(f'v_pk_fma_f32 {v(vC0+2*t,2)}, {v(vC0+2*t,2)}, {v(vXNf+2*t,2)}, {v(vXf+2*t,2)}')
stamp('ep pre')
A.wait_vm('g3')
vYf = 36
tmp = [vYf + i for i in range(8)]
G3CHK = ''
for kq in range(4):
    G3CHK += f'v_xor_b32 {v(tmp[2*kq])}, {s(sTA)}, {v(vP+4*kq+1)}\nv_xor_b32 {v(tmp[2*kq+1])}, {s(sTB)}, {v(vP+4*kq+3)}\n'
G3CHK += f'''v_or3_b32 {v(vT0)}, {v(tmp[0])}, {v(tmp[1])}, {v(tmp[2])}
v_or3_b32 {v(vT1)}, {v(tmp[3])}, {v(tmp[4])}, {v(tmp[5])}
v_or3_b32 {v(vT0)}, {v(vT0)}, {v(tmp[6])}, {v(tmp[7])}
v_or_b32 {v(vT0)}, {v(vT0)}, {v(vT1)}
v_cmp_ne_u32 vcc, 0, {v(vT0)}
s_cmp_lg_u64 vcc, 0'''
A.label('L_g3chk', fence=False)
A(G3CHK)
A('s_cbranch_scc1 L_g3bad')
stamp('g3 in')
for tk in (0, 2):
    A(f'v_add_f32 {v(vP+tk)}, {v(vP+tk)}, {v(vP+4+tk)}')
    A(f'v_add_f32 {v(vP+8+tk)}, {v(vP+8+tk)}, {v(vP+12+tk)}')
A(f'v_and_b32 {v(vT1)}, 1, {v(vL)}')
A(f'v_add_f32 {v(vP)}, {v(vP)}, {v(vP+8)}')
A(f'v_add_f32 {v(vP+1)}, {v(vP+2)}, {v(vP+10)}')
A(f'v_cmp_eq_u32 vcc, 1, {v(vT1)}')
for q in ('v_mul_f32 {t}, 0xbfb8aa3b, {x}', 'v_exp_f32 {t}, {t}', 'v_add_f32 {t}, 1.0, {t}', 'v_rcp_f32 {t}, {t}', 'v_mul_f32 {t}, {x}, {t}', 'v_cndmask_b32 {x}, {t}, {x}, vcc'):
    for tk in (0, 1):
        A(q.format(t=v(vP + 2 + tk), x=v(vP + tk)))
A(f'''
v_lshrrev_b32 {v(vT0)}, 3, {v(vJ)}
v_lshlrev_b32 {v(vT0)}, 7, {v(vT0)}
''')
for tk in (0, 1):
    A(f'v_mul_f32_dpp {v(vP+2+tk)}, {v(vP+tk)}, {v(vP+tk)} quad_perm:[1,0,3,2] row_mask:0xf bank_mask:0xf')
A(f'''
v_cndmask_b32 {v(vP+2)}, {v(vP+2)}, {v(vP+3)}, vcc
v_cvt_pk_bf16_f32 {v(vP+2)}, {v(vP+2)}, {v(vP+2)}
''')
A.ds(f'ds_write_b32 {v(vHS)}, {v(vP+2)}')
A(f'''
v_lshl_add_u32 {v(vT0)}, {v(vG)}, 5, {v(vT0)}
v_add_u32 {v(vT0)}, {s(sHS)}, {v(vT0)}
''')
A.ds(f'ds_read_b128 {v(vP,4)}, {v(vT0)}', 'h0')
A.ds(f'ds_read_b128 {v(vP+4,4)}, {v(vT0)} offset:16', 'h1')
vAO2 = 120
vLG = vP + 8
A(f'''
v_mov_b32 {v(vLG+1)}, {s(sTA)}
v_mov_b32 {v(vLG+3)}, {s(sTB)}
v_mov_b32 {v(vLG+5)}, {s(sTA)}
v_mov_b32 {v(vLG+7)}, {s(sTB)}
''')
A.wait_lg('h0')
for i in range(7):
    if i == 4:
        A.wait_lg('h1')
    ao = vAO2 + 4 * (i & 3)
    for d in range(4):
        A(f'v_and_b32 {v(ao+d)}, {v(vP+i)}, {v(vMASK+d)}')
    if i >= 1:
        c = '0' if i == 1 else v(vDG, 4)
        A(f'v_mfma_f32_16x16x32_bf16 {v(vDG,4)}, {v(vAO2+4*((i-1)&3),4)}, {a(32*(i-1),4)}, {c}')
A(f'v_mfma_f32_16x16x32_bf16 {v(vDG,4)}, {v(vAO2+8,4)}, {a(32*6,4)}, {v(vDG,4)}')
A(f's_mov_b32 {s(sG)}, 1')
for r in range(4):
    A(f'v_mov_b32 {v(vLG+2*r)}, {v(vDG+r)}')
A(f'buffer_store_dwordx4 {v(vLG,4)}, {v(vLA)}, {s(SWS,4)}, 0 offen')
A(f'buffer_store_dwordx4 {v(vLG+4,4)}, {v(vLA)}, {s(SWS,4)}, 0 offen offset:16')
stamp('L3 out')
A(f's_cmp_lg_u32 {s(sY)}, 0')
A('s_cbranch_scc1 L_fin')
A('s_waitcnt vmcnt(2)')
A.label('L_y', fence=False)
chk = f'v_max3_u32 {v(vT0)}, {v(vYL)}, {v(vYL+1)}, {v(vYL+2)}\n'
chk += f'v_max3_u32 {v(vT1)}, {v(vYL+3)}, {v(vYL+4)}, {v(vYL+5)}\n'
for i in range(6, 16, 4):
    chk += f'v_max3_u32 {v(vT0)}, {v(vT0)}, {v(vYL+i)}, {v(vYL+i+1)}\n'
    if i + 3 < 16:
        chk += f'v_max3_u32 {v(vT1)}, {v(vT1)}, {v(vYL+i+2)}, {v(vYL+i+3)}\n'
chk += f'v_max_u32 {v(vT0)}, {v(vT0)}, {v(vT1)}\nv_cmp_eq_u32 vcc, -1, {v(vT0)}'
checked(A, 'y', YRE, chk)
stamp('y in')
A(f'''
s_lshr_b32 {s(sT0)}, {s(sI0)}, 4
s_lshr_b32 {s(sT1)}, {s(sI1)}, 4
s_cmp_eq_u32 {s(sT0)}, {s(sA)}
s_cbranch_scc1 L_owner
s_cmp_eq_u32 {s(sT1)}, {s(sA)}
s_cbranch_scc1 L_owner
''')


def epi_math(hf):
    for e in (0, 1):
        for d in range(4):
            src = vYL + 8 * e + 4 * hf + d
            A(f'v_lshlrev_b32 {v(vYf+2*(2*d)+e)}, 16, {v(src)}')
            A(f'v_and_b32 {v(vYf+2*(2*d+1)+e)}, {HI}, {v(src)}')
    for i in range(8):
        t = 8 * hf + i
        A(f'v_pk_fma_f32 {v(vC0+2*t,2)}, {v(vYf+2*i,2)}, {v(vXNf+2*t,2)}, {v(vC0+2*t,2)}')


for hf in range(2):
    epi_math(hf)
    for t in range(8 * hf, 8 * hf + 8):
        A(f'v_cvt_pk_bf16_f32 {v(vXT+t)}, {v(vC0+2*t)}, {v(vC0+2*t+1)}')
        so, im = row_addr(t)
        A(f'buffer_store_dword {v(vXT+t)}, {v(vOT)}, {s(SOUT,4)}, {so} offen offset:{im}{args.outflags}')
A.label('L_epid', fence=False)
stamp('out stored')
A(f'''
s_mov_b32 {s(sY)}, 1
s_cmp_lg_u32 {s(sG)}, 0
s_cbranch_scc1 L_fin
''')
A.label('L_g3loop', fence=False)
A(f'''
s_sub_u32 {s(sCNT)}, {s(sCNT)}, 1
s_cbranch_scc1 L_end
{G3RE}
s_waitcnt vmcnt(0)
s_branch L_g3chk
''')
A.label('L_g3bad', fence=False)
A(f'''
s_cmp_lg_u32 {s(sY)}, 0
s_cbranch_scc1 L_g3loop
s_waitcnt vmcnt(0)
s_branch L_y
''')
A.label('L_owner', fence=False)
epi_math(0)
epi_math(1)
A(f's_mov_b32 {s(sOWN)}, 0')
for tok in (0, 1):
    sI = sI0 + tok
    l = f'L_own{tok}'
    A(f'''
s_lshr_b32 {s(sT0)}, {s(sI)}, 4
s_cmp_lg_u32 {s(sT0)}, {s(sA)}
s_cbranch_scc1 {l}
s_and_b32 {s(sT0)}, {s(sI)}, 15
s_bitset1_b32 {s(sOWN)}, {s(sT0)}
s_lshl_b32 {s(sT0)}, {s(sT0)}, 1
s_set_gpr_idx_on {s(sT0)}, gpr_idx(SRC0)
s_nop 1
v_mov_b32 {v(vYf+4*tok)}, {v(vC0)}
v_mov_b32 {v(vYf+4*tok+2)}, {v(vC0+1)}
s_set_gpr_idx_off
v_mov_b32 {v(vYf+4*tok+1)}, {s(sTA)}
v_mov_b32 {v(vYf+4*tok+3)}, {s(sTB)}
s_lshl_b32 {s(sT0)}, {s(sX)}, 11
s_add_u32 {s(sT0)}, {s(sT0)}, {WS_OB + tok*1024}
buffer_store_dwordx4 {v(vYf+4*tok,4)}, {v(vL16)}, {s(SWS,4)}, {s(sT0)} offen
''')
    A.label(l, fence=False)
for t in range(16):
    A(f'v_cvt_pk_bf16_f32 {v(vXT+t)}, {v(vC0+2*t)}, {v(vC0+2*t+1)}')
    so, im = row_addr(t)
    A(f's_bitcmp1_b32 {s(sOWN)}, {t}')
    A(f's_cselect_b32 {s(sT0)}, 0x40000000, {so}')
    A(f'buffer_store_dword {v(vXT+t)}, {v(vOT)}, {s(SOUT,4)}, {s(sT0)} offen offset:{im}{args.outflags}')
A('s_branch L_epid')
A.label('L_fin', fence=False)
vL3, vO = 168, 136
if args.wb:
    A(f's_cmp_lg_u32 {s(sW)}, 1')
    A('s_cbranch_scc1 L_nowb')
    if args.wb > 1:
        A(f's_and_b32 {s(sT0)}, {s(sS)}, {args.wb-1}')
        A('s_cbranch_scc1 L_nowb')
    A('s_waitcnt vmcnt(0)')
    A.raw('    buffer_wbl2 sc1')
    A.label('L_nowb', fence=False)
A(f'''
s_cmp_lg_u32 {s(sW)}, 0
s_cbranch_scc1 L_done
v_bfe_u32 {v(vT0)}, {v(vL)}, 1, 1
v_and_b32 {v(vT1)}, 1, {v(vL)}
v_lshlrev_b32 {v(vPA)}, 10, {v(vT0)}
v_lshl_add_u32 {v(vPA)}, {v(vT1)}, 4, {v(vPA)}
s_lshl_b32 {s(sT0)}, {s(sX)}, 11
s_lshl_b32 {s(sT1)}, {s(sS)}, 5
s_add_u32 {s(sT0)}, {s(sT0)}, {s(sT1)}
s_add_u32 {s(sT0)}, {s(sT0)}, {WS_OB}
v_add_u32 {v(vPA)}, {s(sT0)}, {v(vPA)}
''')
A.label('L_finre', fence=False)
for i in range(8):
    A(f'buffer_load_dwordx4 {v(vL3+4*i,4)}, {v(vIA)}, {s(SWS,4)}, {soff(i>>2)} offen offset:{1024*(i&3)} sc1')
A(f'buffer_load_dwordx4 {v(vO,4)}, {v(vPA)}, {s(SWS,4)}, 0 offen sc1')
A(f'''
v_cmp_eq_u32 vcc, 1, {v(vT0)}
v_mov_b32 {v(vYf)}, {s(sK0)}
v_mov_b32 {v(vYf+1)}, {s(sK1)}
v_cndmask_b32 {v(vYf)}, {v(vYf)}, {v(vYf+1)}, vcc
v_not_b32 {v(vPA2)}, {v(vYf)}
v_and_b32 {v(vPA2)}, 0x7ff, {v(vPA2)}
v_lshlrev_b32 {v(vPA2)}, 11, {v(vPA2)}
v_lshl_add_u32 {v(vPA2)}, {v(vT1)}, 2, {v(vPA2)}
v_ashrrev_i32 {v(vYf+1)}, 31, {v(vYf)}
v_not_b32 {v(vYf+1)}, {v(vYf+1)}
v_or_b32 {v(vYf+1)}, 0x80000000, {v(vYf+1)}
v_xor_b32 {v(vYf)}, {v(vYf)}, {v(vYf+1)}
v_and_b32 {v(vYf)}, {HI}, {v(vYf)}
v_mul_f32 {v(vYf)}, 0xbfb8aa3b, {v(vYf)}
v_exp_f32 {v(vYf)}, {v(vYf)}
s_lshl_b32 {s(sT0)}, {s(sX)}, 8
s_lshl_b32 {s(sT1)}, {s(sS)}, 3
v_add_f32 {v(vYf)}, 1.0, {v(vYf)}
v_rcp_f32 {v(vYf)}, {v(vYf)}
s_add_u32 {s(sT3)}, {s(sT0)}, {s(sT1)}
v_mov_b32 {v(vYf+2)}, 0
s_waitcnt vmcnt(0)
''')
for b in [vL3 + 4 * i for i in range(8)] + [vO]:
    A(f'v_xor_b32 {v(b+1)}, {s(sTA)}, {v(b+1)}')
    A(f'v_xor_b32 {v(b+3)}, {s(sTB)}, {v(b+3)}')
    A(f'v_or3_b32 {v(vYf+2)}, {v(vYf+2)}, {v(b+1)}, {v(b+3)}')
A(f'''
v_cmp_ne_u32 vcc, 0, {v(vYf+2)}
s_cmp_eq_u64 vcc, 0
s_cbranch_scc1 L_finok
s_sub_u32 {s(sCNT)}, {s(sCNT)}, 1
s_cbranch_scc1 L_end
''')
if args.sleep:
    A(f's_sleep {args.sleep}')
A('s_branch L_finre')
A.label('L_finok', fence=False)
for st in (4, 2, 1):
    for i in range(st):
        A(f'v_add_f32 {v(vL3+4*i)}, {v(vL3+4*i)}, {v(vL3+4*(i+st))}')
        A(f'v_add_f32 {v(vL3+4*i+2)}, {v(vL3+4*i+2)}, {v(vL3+4*(i+st)+2)}')
for mod in ('row_ror:4', 'row_ror:8'):
    for r in (vL3, vL3 + 2):
        A(f'v_add_f32_dpp {v(r)}, {v(r)}, {v(r)} {mod} row_mask:0xf bank_mask:0xf')
for sw in ('v_permlane16_swap_b32', 'v_permlane32_swap_b32'):
    for r in (vL3, vL3 + 2):
        A(f'v_mov_b32 {v(r+1)}, {v(r)}')
    for r in (vL3, vL3 + 2):
        A(f'{sw} {v(r)}, {v(r+1)}')
    for r in (vL3, vL3 + 2):
        A(f'v_add_f32 {v(r)}, {v(r)}, {v(r+1)}')
A(f'''
v_fma_f32 {v(vL3)}, {v(vL3)}, {v(vYf)}, {v(vO)}
v_fma_f32 {v(vL3+2)}, {v(vL3+2)}, {v(vYf)}, {v(vO+2)}
v_cvt_pk_bf16_f32 {v(vL3)}, {v(vL3)}, {v(vL3+2)}
s_mov_b64 exec, 15
buffer_store_dword {v(vL3)}, {v(vPA2)}, {s(SOUT,4)}, {s(sT3)} offen
s_mov_b64 exec, -1
''')
A.label('L_done', fence=False)
if args.diag:
    A('s_waitcnt vmcnt(0)')
    stamp('end')
    A(f'''
s_lshl_b32 {s(sT0)}, s2, 10
s_add_u32 {s(sT0)}, {s(sT0)}, {WS_DBG}
v_lshlrev_b32 {v(vT0)}, 2, v0
s_lshl_b32 {s(sT1)}, {s(sX)}, 5
s_add_u32 {s(sT1)}, {s(sT1)}, {s(sS)}
v_writelane_b32 {v(vSTAMP)}, {s(sT1)}, 62
v_writelane_b32 {v(vSTAMP)}, {s(sI0)}, 61
v_writelane_b32 {v(vSTAMP)}, {s(sI1)}, 60
v_writelane_b32 {v(vSTAMP)}, {s(sCNT)}, 59
buffer_store_dword {v(vSTAMP)}, {v(vT0)}, {s(SWS,4)}, {s(sT0)} offen
''')
A.label('L_end', fence=False)
A('s_endpgm')
A.label('L_pollbad', fence=False)
A(f'''
{POLL0}
s_sub_u32 {s(sCNT)}, {s(sCNT)}, 1
s_cbranch_scc1 L_end
s_add_u32 {s(sDONE)}, {s(sDONE)}, 1
s_cmp_lt_u32 {s(sDONE)}, 8
s_cbranch_scc1 L_pollw
s_cmp_lg_u32 {s(sRV)}, 0
s_cbranch_scc1 L_pollw
v_mov_b32 {v(vT0)}, {L_MISC}
s_cmp_lg_u32 {s(sW)}, 0
s_cbranch_scc1 L_rolerd
s_mov_b32 {s(sI1)}, {s(sS)}
''')
A.label('L_claimloop', fence=False)
A(f'''
s_waitcnt lgkmcnt(0)
s_bitcmp0_b32 {s(sCLM)}, {s(sI1)}
s_cbranch_scc1 L_claimed
s_ff0_i32_b32 {s(sI1)}, {s(sCLM)}
s_cmp_lt_i32 {s(sI1)}, 0
s_cbranch_scc1 L_end
s_lshl_b32 {s(sCLM)}, 1, {s(sI1)}
s_atomic_or {s(sCLM)}, {s(pDBG,2)}, {s(sCL)} glc
s_branch L_claimloop
''')
A.label('L_claimed', fence=False)
A(f'''
v_mov_b32 {v(vT1)}, {s(sI1)}
ds_write_b32 {v(vT0)}, {v(vT1)}
''')
A.label('L_rolerd', fence=False)
A(f'''
ds_read_b32 {v(vT1)}, {v(vT0)}
s_waitcnt lgkmcnt(0)
v_readfirstlane_b32 {s(sI1)}, {v(vT1)}
s_and_b32 {s(sI1)}, {s(sI1)}, 31
s_cmp_eq_u32 {s(sI1)}, {s(sS)}
s_cbranch_scc1 L_pollw
s_mov_b32 {s(sS)}, {s(sI1)}
s_mov_b32 {s(sRV)}, 1
s_waitcnt vmcnt(0)
s_branch L_restart
''')
for name, txt in stubs:
    A.label(f'L_{name}_re', fence=False)
    A(f's_sub_u32 {s(sCNT)}, {s(sCNT)}, 1')
    A('s_cbranch_scc1 L_end')
    if name == 'g1' and args.rpf:
        A(f'''
s_add_u32 {s(sRV)}, {s(sRV)}, 2
s_cmp_gt_u32 {s(sRV)}, 3
s_cbranch_scc1 L_rpf2
v_mul_u32_u24 {v(vT0)}, 7168, {v(vL)}
s_sub_u32 {s(sT0)}, {s(sWO)}, {7168*w_at_g1[0]}
buffer_load_dword {v(vT1)}, {v(vT0)}, {s(SWGU,4)}, {s(sT0)} offen
buffer_load_dword {v(64)}, {v(vT0)}, {s(SWGU,4)}, {s(sT0)} offen offset:128
s_branch L_rpf3
''')
        A.label('L_rpf2', fence=False)
        A(f'''
s_cmp_gt_u32 {s(sRV)}, {5 if args.rpf > 1 else 0}
s_cbranch_scc1 L_rpf3
v_lshrrev_b32 {v(vT0)}, 1, {v(vL)}
v_lshlrev_b32 {v(vT0)}, 11, {v(vT0)}
v_and_b32 {v(vT1)}, 1, {v(vL)}
v_lshl_add_u32 {v(vT0)}, {v(vT1)}, 7, {v(vT0)}
s_mul_i32 {s(sT0)}, {s(sA)}, {28*2048}
s_lshl_b32 {s(sT1)}, {s(sX)}, 8
s_add_u32 {s(sT0)}, {s(sT0)}, {s(sT1)}
s_mov_b32 exec_hi, 0xffffff
buffer_load_dword {v(vT1)}, {v(vT0)}, {s(SWD,4)}, {s(sT0)} offen
s_mov_b64 exec, -1
''')
        A.label('L_rpf3', fence=False)
    A(txt)
    A('s_waitcnt vmcnt(0)')
    A(f's_branch L_{name}_chk')
A.raw('.p2align 8')
A.raw(f'.fill ({CODE_PF+4096} - (. - {KNAME}))/4, 4, 0xbf810000')
A.raw(f'''.section .rodata,"a"
.p2align 6
.amdhsa_kernel {KNAME}
  .amdhsa_next_free_vgpr 512
  .amdhsa_next_free_sgpr 102
  .amdhsa_accum_offset 256
  .amdhsa_group_segment_fixed_size 0
  .amdhsa_kernarg_size 112
  .amdhsa_user_sgpr_count 2
  .amdhsa_user_sgpr_kernarg_segment_ptr 1
  .amdhsa_system_sgpr_workgroup_id_x 1
  .amdhsa_float_denorm_mode_32 3
.end_amdhsa_kernel''')
txt = A.text()
if args.al:
    from align import align
    txt, nw, mis = align(txt, args.al - 1)
    if not args.diag:
        print('widened', nw, 'misaligned', mis, file=sys.stderr)
open(args.o, 'w').write(txt)
```
